```python
import torch

def _softmax(x, axis=-1):
    return torch.softmax(x, dim=axis)
def _gelu(x):
    return torch.nn.functional.gelu(x, approximate="tanh")
def _silu(x):
    return torch.nn.functional.silu(x)
def _sigmoid(x):
    return torch.sigmoid(x)
def _layernorm(x, axis=-1, eps=1e-5):
    m = x.mean(dim=axis, keepdim=True)
    v = x.var(dim=axis, keepdim=True, unbiased=False)
    return (x - m) / torch.sqrt(v + eps)
def _scatter_add(tgt, idx, src, axis=0):
    return tgt.clone().index_add_(axis, idx, src)
def _segment_sum(src, seg, n):
    out = torch.zeros((n,) + src.shape[1:], dtype=src.dtype)
    return out.index_add_(0, seg, src)
def _pad(x, pw):
    flat = tuple(v for pair in reversed(pw) for v in pair)
    return torch.nn.functional.pad(x, flat)

kernel_name = 'gated_mix__ssm_conv_s5__mixer_channel_mlp__prompt'

def setup_inputs():

    _w = (lambda a: (lambda t: t.to(torch.bfloat16) if t.is_floating_point() else t)(torch.as_tensor(a)))
    def _A_setup():
        B, S, D = 1, 2048, 448
        P = D
        Lambda_re = -0.5 * (lambda _x: torch.exp(torch.as_tensor(_x)))((lambda *s: torch.randn(*s, dtype=torch.bfloat16) * 0.4)(P))
        Lambda_im = (lambda *s: torch.randn(*s, dtype=torch.bfloat16) * 0.8)(P) * 1.0
        B_re = (lambda *s: torch.randn(*s, dtype=torch.bfloat16) * 0.8)(P, D) * (D ** -0.5)
        B_im = (lambda *s: torch.randn(*s, dtype=torch.bfloat16) * 0.8)(P, D) * (D ** -0.5)
        C_re = (lambda *s: torch.randn(*s, dtype=torch.bfloat16) * 0.8)(D, P) * (P ** -0.5)
        C_im = (lambda *s: torch.randn(*s, dtype=torch.bfloat16) * 0.8)(D, P) * (P ** -0.5)
        log_dt = (lambda *s: torch.randn(*s, dtype=torch.bfloat16) * 0.4)(P) * 0.3 - 2.0
        Dskip = (lambda *s: torch.randn(*s, dtype=torch.bfloat16) * 0.1)(D)
        return {
            "x": _w((lambda *s: torch.randn(*s, dtype=torch.bfloat16) * 0.05)(B, S, D)),
            "Lambda_re": _w(Lambda_re),
            "Lambda_im": _w(Lambda_im),
            "B_re": _w(B_re),
            "B_im": _w(B_im),
            "C_re": _w(C_re),
            "C_im": _w(C_im),
            "log_dt": _w(log_dt),
            "Dskip": _w(Dskip),
        }
    _A_in = _A_setup()

    def _B_setup():
        B, S, D, F = 1, 2048, 448, 1792
        return {
            "x": _w((lambda *s: torch.randn(*s, dtype=torch.bfloat16) * 0.05)(B, S, D)),
            "w1": _w((lambda *s: torch.randn(*s, dtype=torch.bfloat16) * 0.8)(D, F) * (D ** -0.5)),
            "b1": _w((lambda *s: torch.randn(*s, dtype=torch.bfloat16) * 0.4)(F)),
            "w2": _w((lambda *s: torch.randn(*s, dtype=torch.bfloat16) * 0.05)(F, D) * (F ** -0.5)),
            "b2": _w((lambda *s: torch.randn(*s, dtype=torch.bfloat16) * 0.05)(D)),
        }
    _B_in = _B_setup()

    return {
        "A_x": _A_in["x"],
        "A_Lambda_re": _A_in["Lambda_re"],
        "A_Lambda_im": _A_in["Lambda_im"],
        "A_B_re": _A_in["B_re"],
        "A_B_im": _A_in["B_im"],
        "A_C_re": _A_in["C_re"],
        "A_C_im": _A_in["C_im"],
        "A_log_dt": _A_in["log_dt"],
        "A_Dskip": _A_in["Dskip"],
        "B_x": _B_in["x"],
        "B_w1": _B_in["w1"],
        "B_b1": _B_in["b1"],
        "B_w2": _B_in["w2"],
        "B_b2": _B_in["b2"],
        "gate_w": _w((lambda *s: torch.randn(*s, dtype=torch.bfloat16) * 0.05)(448) * 16.0),
    }

def reference(A_x, A_Lambda_re, A_Lambda_im, A_B_re, A_B_im, A_C_re, A_C_im, A_log_dt, A_Dskip, B_x, B_w1, B_b1, B_w2, B_b2, gate_w):
    def _A_ref(x, Lambda_re, Lambda_im, B_re, B_im, C_re, C_im, log_dt, Dskip):
        Bsz, L, H = x.shape
        Lam = Lambda_re + 1j * Lambda_im
        Bmat = B_re + 1j * B_im
        Cmat = C_re + 1j * C_im
        dt = torch.exp(log_dt)
        Lam_bar = torch.exp(dt * Lam)
        B_bar = ((Lam_bar - 1.0) / Lam)[:, None] * Bmat
        Bu = torch.einsum("bld,pd->blp", x + 0j, B_bar)
        h = torch.zeros_like(Bu[:, 0, :])
        hs = []
        for t in range(L):
            h = Lam_bar[None, :] * h + Bu[:, t, :]
            hs.append(h)
        hseq = torch.stack(hs, 1)
        y = 2.0 * torch.einsum("blp,dp->bld", hseq, Cmat).real + x * Dskip[None, None, :]
        return y

    def _B_ref(x, w1, b1, w2, b2):
        y = _layernorm(x, axis=-1)
        h = _gelu(torch.einsum("bsd,df->bsf", y, w1) + b1)
        return torch.einsum("bsf,fd->bsd", h, w2) + b2

    x = A_x
    g = _sigmoid((x * gate_w).sum(-1, keepdims=True))
    a = _A_ref(x, A_Lambda_re, A_Lambda_im, A_B_re, A_B_im, A_C_re, A_C_im, A_log_dt, A_Dskip)
    b = _B_ref(x, B_w1, B_b1, B_w2, B_b2)
    return g * a + (1 - g) * b
```

```python
import re, copy

RE_V = re.compile(r'^-?\|?v(\d+)\|?$')
RE_VR = re.compile(r'^v\[(\d+):(\d+)\]$')
RE_S = re.compile(r'^-?s(\d+)$')
RE_SR = re.compile(r'^s\[(\d+):(\d+)\]$')

def regs_of(op):
    op = op.strip()
    if op.startswith('abs(') and op.endswith(')'): op = op[4:-1]
    if op.startswith('-abs(') and op.endswith(')'): op = op[5:-1]
    m = RE_V.match(op)
    if m: return [('v', int(m.group(1)))]
    m = RE_VR.match(op)
    if m: return [('v', i) for i in range(int(m.group(1)), int(m.group(2)) + 1)]
    m = RE_S.match(op)
    if m: return [('s', int(m.group(1)))]
    m = RE_SR.match(op)
    if m: return [('s', i) for i in range(int(m.group(1)), int(m.group(2)) + 1)]
    if op == 'vcc': return [('s', 'vcc')]
    if op == 'exec': return [('s', 'exec')]
    if op == 'm0': return [('s', 'm0')]
    return []

TRANS = ('v_exp_f32', 'v_log_f32', 'v_rcp_f32', 'v_rsq_f32', 'v_sqrt_f32', 'v_sin_f32', 'v_cos_f32')

class Ins:
    def __init__(self, text):
        self.text = text
        t = text.split(';')[0].strip()
        sp = t.split(None, 1)
        self.mn = sp[0]
        rest = sp[1] if len(sp) > 1 else ''
        parts = [p.strip() for p in rest.split(',')] if rest else []
        ops = []; depth = 0; cur = ''
        for ch in rest:
            if ch == '[': depth += 1
            if ch == ']': depth -= 1
            if ch == ',' and depth == 0:
                ops.append(cur.strip()); cur = ''
            else: cur += ch
        if cur.strip(): ops.append(cur.strip())
        self.mods = ''
        if ops:
            l = ops[-1].split(None, 1)
            ops[-1] = l[0]
            self.mods = l[1] if len(l) > 1 else ''
        self.ops = ops
        mn = self.mn
        self.dpp = 'quad_perm' in self.mods or 'row_' in self.mods or mn.endswith('_dpp')
        self.kind = None; self.w = []; self.r = []
        R = lambda xs: [x for o in xs for x in regs_of(o)]
        if mn.startswith('v_mfma'):
            self.kind = 'mfma'; self.w = R(ops[:1]); self.r = R(ops[1:]); self.srcc = R(ops[3:4]); self.srcab = R(ops[1:3])
            self.passes = 8 if '32x32x16' in mn else (4 if '16x16x32' in mn else 2)
        elif mn.startswith('v_cmp'):
            self.kind = 'valu'; self.w = R(ops[:1]); self.r = R(ops[1:])
        elif mn.startswith('v_permlane'):
            self.kind = 'valu'; self.w = R(ops[:2]); self.r = R(ops[:2]); self.perm = True
        elif mn.startswith('v_readfirstlane') or mn.startswith('v_readlane'):
            self.kind = 'valu'; self.w = R(ops[:1]); self.r = R(ops[1:]); self.rdlane = True
        elif mn.startswith('v_add_co') or mn.startswith('v_addc_co') or mn.startswith('v_sub_co'):
            self.kind = 'valu'; self.w = R(ops[:2]); self.r = R(ops[2:])
        elif mn.startswith('v_'):
            self.kind = 'valu'; self.w = R(ops[:1]); self.r = R(ops[1:])
            if mn.startswith('v_fmac') or mn.startswith('v_dot2c') or self.dpp: self.r += self.w
            if mn.startswith('v_cndmask') and len(ops) == 3: self.r += [('s', 'vcc')]
        elif mn.startswith('ds_read') or mn.startswith('ds_bpermute'):
            self.kind = 'dsr'; self.w = R(ops[:1]); self.r = R(ops[1:])
        elif mn.startswith('ds_write'):
            self.kind = 'dsw'; self.r = R(ops)
        elif mn.startswith('buffer_load') and ' lds' in (' ' + self.mods):
            self.kind = 'dma'; self.r = R(ops) + [('s', 'm0')]
        elif mn.startswith('buffer_load') or mn.startswith('global_load'):
            self.kind = 'vld'; self.w = R(ops[:1]); self.r = R(ops[1:])
        elif mn.startswith('buffer_store'):
            self.kind = 'vst'; self.r = R(ops); self.data = R(ops[:1]); self.wide = 'x4' in mn or 'x3' in mn
        elif mn.startswith('global_store'):
            self.kind = 'vst'; self.r = R(ops); self.data = R(ops[1:2]); self.wide = 'x4' in mn or 'x3' in mn
        elif mn.startswith('s_load') or mn.startswith('s_memrealtime') or mn.startswith('s_memtime'):
            self.kind = 'smem'; self.w = R(ops[:1]); self.r = R(ops[1:])
        elif mn in ('s_waitcnt', 's_barrier', 's_nop', 's_sleep', 's_setprio', 's_endpgm') or mn.startswith('s_cbranch') or mn == 's_branch':
            self.kind = 'ctl'
            if 'vcc' in mn: self.r = [('s', 'vcc')]
        elif mn.startswith('s_cmp') or mn.startswith('s_bitcmp'):
            self.kind = 'salu'; self.r = R(ops)
        elif mn.startswith('s_'):
            self.kind = 'salu'; self.w = R(ops[:1]); self.r = R(ops[1:])
            if 'saveexec' in mn: self.w += [('s', 'exec')]
        else:
            raise ValueError('unknown ' + text)
        self.trans = mn.replace('_e32', '').replace('_e64', '') in TRANS
        self.dot = mn.startswith('v_dot')
        self.states = 1
        if mn == 's_nop': self.states = int(ops[0]) + 1

class State:
    def __init__(self):
        self.hist = []
        self.vm = []
        self.lg = []
    def clone(self): return copy.deepcopy(self)

class Emitter:
    def __init__(self, verbose=False):
        self.lines = []; self.st = State(); self.nops = 0; self.autow = []; self.verbose = verbose; self.count = {}
    def raw(self, t): self.lines.append(t)
    def comment(self, t): self.lines.append('  ; ' + t)
    def label(self, l, fresh=True):
        self.lines.append(l + ':')
    def _dist(self, pred):
        d = 0
        for h in reversed(self.st.hist):
            if pred(h): return d
            d += h.states
        return None
    def _need(self, I):
        need = 0
        rs, ws = set(I.r), set(I.w)
        sg = lambda x: x[0] == 's'
        def chk(pred, n):
            nonlocal need
            d = self._dist(pred)
            if d is not None and d < n: need = max(need, n - d)
        isv = I.kind == 'valu'
        vw = lambda h: h.kind == 'valu'
        if I.kind in ('vld', 'vst', 'dma'):
            chk(lambda h: vw(h) and any(sg(x) and x in rs for x in h.w), 5)
        if I.kind == 'dma':
            chk(lambda h: h.kind == 'salu' and ('s', 'm0') in h.w, 1)
        if isv:
            if I.dpp:
                src = set(regs_of(I.ops[1]))
                chk(lambda h: vw(h) and src & set(h.w), 2)
                chk(lambda h: vw(h) and ('s', 'exec') in h.w, 5)
            if getattr(I, 'perm', False): chk(lambda h: vw(h) and rs & set(h.w), 2)
            if getattr(I, 'rdlane', False): chk(lambda h: vw(h) and rs & set(h.w), 1)
            chk(lambda h: vw(h) and any(sg(x) and x in rs for x in h.w), 2)
            if not I.trans: chk(lambda h: vw(h) and h.trans and rs & set(h.w), 1)
            chk(lambda h: vw(h) and h.dot and (rs | ws) & set(h.w) and not (h.mn == I.mn and not (set(regs_of(I.ops[1]) + regs_of(I.ops[2])) & set(h.w))), 3)
            chk(lambda h: h.kind == 'vst' and h.wide and ws & set(h.data), 2)
            for p, n, m in ((8, 12, 7), (4, 8, 3), (2, 5, 1)):
                chk(lambda h: h.kind == 'mfma' and h.passes == p and (rs | ws) & set(h.w), n)
                chk(lambda h: h.kind == 'mfma' and h.passes == p and ws & set(h.srcc), m)
        if I.kind in ('dsr', 'vld'):
            chk(lambda h: h.kind == 'vst' and h.wide and ws & set(h.data), 1)
        if I.kind in ('dsr', 'dsw', 'vld', 'vst', 'dma'):
            for p, n in ((8, 12), (4, 8), (2, 5)):
                chk(lambda h: h.kind == 'mfma' and h.passes == p and (rs | ws) & set(h.w), n)
            chk(lambda h: vw(h) and h.trans and rs & set(h.w), 1)
            chk(lambda h: vw(h) and h.dot and rs & set(h.w), 3)
        if I.kind == 'mfma':
            chk(lambda h: vw(h) and rs & set(h.w), 2 )
            chk(lambda h: vw(h) and h.dot and rs & set(h.w), 3)
            chk(lambda h: vw(h) and ('s', 'exec') in h.w, 4)
            ab = set(I.srcab); c = set(I.srcc)
            for p, n, m in ((8, 12, 10), (4, 8, 6), (2, 5, 4)):
                chk(lambda h: h.kind == 'mfma' and h.passes == p and ab & set(h.w), n)
                chk(lambda h: h.kind == 'mfma' and h.passes == p and c & set(h.w) and not (set(h.w) == c and h.passes == I.passes and p > 2), m)
                chk(lambda h: h.kind == 'mfma' and h.passes == p and ws & set(h.w) and not (set(h.w) == c and h.passes == I.passes), m)
        if I.kind == 'salu' or (I.kind == 'ctl' and I.r):
            chk(lambda h: vw(h) and any(sg(x) and x in rs for x in h.w), 4 if I.kind == 'salu' else 5)
        return need
    def _push(self, I):
        self.lines.append('  ' + I.text)
        self.st.hist.append(I)
        if len(self.st.hist) > 40: self.st.hist.pop(0)
        self.count[I.kind] = self.count.get(I.kind, 0) + 1
    def _wait(self, vm=None, lg=None, why=''):
        t = 's_waitcnt'
        if vm is not None:
            assert vm <= 63
            t += ' vmcnt(%d)' % vm
            self.st.vm = self.st.vm[len(self.st.vm) - vm:] if vm else []
        if lg is not None:
            lg = min(lg, 15)
            t += ' lgkmcnt(%d)' % lg
            self.st.lg = self.st.lg[len(self.st.lg) - lg:] if lg else []
        I = Ins(t + ((' ; ' + why) if why else ''))
        self._push(I)
    def wait_tag(self, tag, lg=None):
        idx = [k for k, o in enumerate(self.st.vm) if o['tag'] == tag]
        vm = None
        if idx: vm = len(self.st.vm) - 1 - max(idx)
        if lg is not None and len(self.st.lg) <= lg: lg = None
        if vm is None and lg is None: return
        self._wait(vm, lg, str(tag))
    def wait_lg(self, n=0):
        if len(self.st.lg) > n: self._wait(None, n)
    def wait_vm(self, n=0):
        if len(self.st.vm) > n: self._wait(n, None)
    def __call__(self, text, tag=None):
        for t in text.strip().split('\n'):
            t = t.strip()
            if not t: continue
            if t.startswith(';'): self.comment(t[1:].strip()); continue
            if t.endswith(':'): self.label(t[:-1]); continue
            self.ins(t, tag)
    def ins(self, text, tag=None):
        I = Ins(text)
        touched = set(I.r) | set(I.w)
        vm = None; lg = None
        for k, o in enumerate(self.st.vm):
            if touched & o['w']: vm = len(self.st.vm) - 1 - k
        anysm = any(o['smem'] for o in self.st.lg)
        for k, o in enumerate(self.st.lg):
            if touched & o['w']: lg = 0 if anysm else len(self.st.lg) - 1 - k
        if vm is not None or lg is not None:
            self._wait(vm, lg, 'auto')
        n = self._need(I)
        while n > 0:
            k = min(n, 16)
            self._push(Ins('s_nop %d' % (k - 1))); self.nops += k; n -= k
        if I.mn == 's_waitcnt':
            m = re.search(r'vmcnt\((\d+)\)', text)
            if m:
                v = int(m.group(1)); self.st.vm = self.st.vm[max(0, len(self.st.vm) - v):] if v else []
            m = re.search(r'lgkmcnt\((\d+)\)', text)
            if m:
                v = int(m.group(1)); self.st.lg = self.st.lg[max(0, len(self.st.lg) - v):] if v else []
        self._push(I)
        if I.kind in ('vld', 'vst', 'dma'):
            self.st.vm.append(dict(tag=tag, w=set(I.w)))
            assert len(self.st.vm) <= 63, 'vmcnt overflow'
        if I.kind in ('dsr', 'dsw', 'smem'):
            self.st.lg.append(dict(w=set(I.w), smem=I.kind == 'smem'))
            if len(self.st.lg) > 15 and False: print('warn lgkm > 15')
    def text(self): return '\n'.join(self.lines) + '\n'
```

```python
import sys, math, struct
from emit import Emitter, Ins

NAME = "gated_mix__ssm_conv_s5__mixer_channel_mlp__prompt"
KN = NAME + "_kernel"

def f2u(x): return struct.unpack('<I', struct.pack('<f', x))[0]
def fl(x): return '0x%08x' % f2u(x)

XY = 0
RING = 57344
SLOT = 16384
NSLOT = 6
SM = RING + NSLOT * SLOT
TB1 = SM; TDS = SM + 1024; TB2 = SM + 1536; GW = SM + 2048; ST = SM + 3072; G2T = SM + 7168
STB = ST; TG = ST + 1024
LDS_BYTES = 163840
HH = XY + 32768
WS_CARRY = 0
WS_EXCH = 1 << 20
PSLAB = 12288
WS_STAMP = 200 << 20
WS_DUMP = 64 << 20

sX, sLRE, sLIM, sBRE, sBIM, sCRE, sCIM, sLDT = 4, 6, 8, 10, 12, 14, 16, 18
sDSK, sBX, sW1, sB1, sW2, sB2, sGATE, sOUT = 20, 22, 24, 26, 28, 30, 32, 34
sDBG, sWS = 36, 38
rX, rB, rW1, rW2, rCRE, rCIM, rWS, rOUT, rCAR, rT = 40, 44, 48, 52, 56, 60, 64, 68, 72, 76
sI, sJ, sW, sW1K, sT0, sT1, sNON, sCNT = 80, 81, 82, 83, 84, 85, 86, 87
sXB, sBB, sW1B = 88, 89, 90
sW2B = [4 + k for k in range(7)]
sCB = [11 + k for k in range(7)]
sEX = [18 + k for k in range(6)]
sGA = 24
s4096 = 25
sSTAMP = 92

X0 = 16
def X(k): return X0 + 4 * k
accS, accA, accB, F0, F1 = 128, 144, 160, 176, 192
FB = [F0, F1]
vDB, vDW1, vDW2, vDC = 0, 1, 2, 3
RA = [4 + k for k in range(8)]
RT = [12, 13]
vLIN, vLN = 14, 15
RX = [208 + k for k in range(4)]
vLr, vLi, vA1, vA2 = 212, 213, 214, 215
vP16r, vP16i, vP32r, vP32i, vP64r, vP64i, vP512r, vP512i = range(216, 224)
vR, vNMR, vIG, vG = 224, 225, 226, 227
vS0, vSTB, vTa, vTb = 228, 229, 230, 231
T = list(range(232, 256))
vJ = 255
def vr(a, n): return 'v[%d:%d]' % (a, a + n - 1)
def sr(a, n): return 's[%d:%d]' % (a, a + n - 1)
DPP = 'quad_perm:[1,0,3,2] row_mask:0xf bank_mask:0xf'

def gen(cfg):
    MAP = cfg.get('map', 'A')
    STAMPS = cfg.get('stamps', False)
    DUMP = cfg.get('dump', [])
    e = Emitter()
    nstamp = [0]
    def stamp():
        if STAMPS and nstamp[0] < 5:
            e('s_memrealtime %s' % sr(sSTAMP + 2 * nstamp[0], 2)); e.st.lg.pop(); nstamp[0] += 1
    def srd(r, p, n):
        e(f's_mov_b32 s{r}, s{p}\ns_mov_b32 s{r+1}, s{p+1}\ns_mov_b32 s{r+2}, {n}\ns_mov_b32 s{r+3}, 0x00020000')
    def dump(reg, n, slot):
        e(f's_lshl_b32 s{sT0}, s2, 3\ns_add_u32 s{sT0}, s{sT0}, s{sW}\ns_mul_i32 s{sT0}, s{sT0}, {128*256}\ns_add_u32 s{sT0}, s{sT0}, {WS_DUMP + slot*256}')
        e(f'v_lshlrev_b32 v{T[22]}, 2, v{vLN}')
        for k in range(n):
            e(f'buffer_store_dword v{reg+k}, v{T[22]}, {sr(rWS,4)}, s{sT0} offen')
            e(f's_add_u32 s{sT0}, s{sT0}, 256')
            if k % 16 == 15: e('s_waitcnt vmcnt(0)')

    def dumps(n):
        for d in DUMP:
            if d[0] == n: dump(*d[1:])

    e('s_cmp_ge_u32 s2, 256\ns_cbranch_scc1 L_end')
    if MAP == 'A':
        e(f's_and_b32 s{sJ}, s2, 7\ns_lshr_b32 s{sI}, s2, 3')
        NSH = 32
    else:
        e(f's_and_b32 s{sT0}, s2, 1\ns_lshl_b32 s{sT0}, s{sT0}, 4\ns_bfe_u32 s{sI}, s2, 0x40003\ns_add_u32 s{sI}, s{sI}, s{sT0}')
        e(f's_and_b32 s{sJ}, s2, 6\ns_lshr_b32 s{sT0}, s2, 7\ns_add_u32 s{sJ}, s{sJ}, s{sT0}')
        NSH = 16
    e(f's_cmp_eq_u32 s{sJ}, 7\ns_cbranch_scc1 L_end')
    stamp()
    e(f's_load_dwordx16 s[4:19], s[0:1], 0\ns_load_dwordx16 s[20:35], s[0:1], 64\ns_load_dwordx4 s[36:39], s[0:1], 128')
    e(f's_memrealtime s[{sNON}:{sNON+1}]')
    e(f's_getpc_b64 s[{rT}:{rT+1}]\nv_lshlrev_b32 v{T[0]}, 6, v0\nv_min_u32 v{T[0]}, @CODE_LEN@, v{T[0]}')
    e(f'global_load_dword v{vJ}, v{T[0]}, s[{rT}:{rT+1}]', tag='pf')
    e.st.vm[-1]['w'] = set()
    e(f'v_readfirstlane_b32 s{sW}, v0\nv_and_b32 v{vLN}, 63, v0')
    e(f's_lshr_b32 s{sW}, s{sW}, 6\ns_lshl_b32 s{sW1K}, s{sW}, 10')
    L = vLN
    r_, c_, n_, h_ = T[2], T[3], T[4], T[5]
    a, b, c, d = T[6], T[7], T[8], T[9]
    vDX = T[10]
    e(f'v_lshrrev_b32 v{r_}, 3, v{L}\nv_and_b32 v{c_}, 7, v{L}\nv_and_b32 v{n_}, 31, v{L}\nv_lshrrev_b32 v{h_}, 5, v{L}')
    e(f's_and_b32 s{sT0}, s{sW}, 1\ns_lshl_b32 s{sT0}, s{sT0}, 2')
    e(f'v_lshrrev_b32 v{a}, 1, v{r_}\nv_add_u32 v{a}, s{sT0}, v{a}\nv_xor_b32 v{a}, v{a}, v{c_}\nv_lshlrev_b32 v{a}, 4, v{a}')
    e(f'v_mul_u32_u24 v{b}, 896, v{r_}\nv_add_u32 v{vDC}, v{a}, v{b}')
    e(f's_lshr_b32 s{sT0}, s{sW}, 2\ns_lshl_b32 s{sT0}, s{sT0}, 5\ns_and_b32 s{sT1}, s{sW}, 3\ns_lshl_b32 s{sT1}, s{sT1}, 2\ns_add_u32 s{sT0}, s{sT0}, s{sT1}')
    e(f'v_lshrrev_b32 v{c}, 2, v{r_}\nv_lshlrev_b32 v{c}, 4, v{c}\nv_and_b32 v{d}, 3, v{r_}\nv_add3_u32 v{c}, v{c}, v{d}, s{sT0}')
    e(f'v_mul_u32_u24 v{c}, 896, v{c}\nv_add_u32 v{vDX}, v{c}, v{a}')
    e(f's_mul_i32 s{sXB}, s{sI}, {64*896}')
    vPO = T[11]
    e(f's_lshr_b32 s{sT0}, s{sW}, 1\ns_lshl_b32 s{sT0}, s{sT0}, 4\ns_lshl_b32 s{sT1}, s{sJ}, 6\ns_add_u32 s{sT0}, s{sT0}, s{sT1}')
    e(f'v_lshrrev_b32 v{vPO}, 1, v{n_}\nv_add_lshl_u32 v{vPO}, v{vPO}, s{sT0}, 1')
    vTO = T[12]
    e(f'v_lshlrev_b32 v{vTO}, 2, v{L}')
    e('s_waitcnt lgkmcnt(0)')
    srd(rX, sX, 2048 * 896)
    pL, pI, pD, pT = T[13], T[14], T[15], T[16]
    e(f'global_load_ushort v{pL}, v{vPO}, s[{sLRE}:{sLRE+1}]\nglobal_load_ushort v{pI}, v{vPO}, s[{sLIM}:{sLIM+1}]\nglobal_load_ushort v{pD}, v{vPO}, s[{sLDT}:{sLDT+1}]')
    e(f's_mov_b32 s{rT}, s{sGATE}\ns_mov_b32 s{rT+1}, s{sGATE+1}\ns_mov_b32 s{rT+2}, 896\ns_sub_u32 s{sT0}, s{sW}, 4\ns_lshl_b32 s{sT0}, s{sT0}, 8')
    e(f's_lshl_b32 s{sT1}, s{sJ}, 7')
    e(f's_cmp_eq_u32 s{sW}, 3\ns_cselect_b32 s{rT}, s{sB2}, s{rT}\ns_cselect_b32 s{rT+1}, s{sB2+1}, s{rT+1}\ns_cselect_b32 s{sT0}, s{sT1}, s{sT0}')
    e(f's_cmp_eq_u32 s{sW}, 2\ns_cselect_b32 s{rT}, s{sDSK}, s{rT}\ns_cselect_b32 s{rT+1}, s{sDSK+1}, s{rT+1}\ns_cselect_b32 s{sT0}, s{sT1}, s{sT0}')
    e(f's_lshl_b32 s{sT1}, s{sJ}, 1\ns_add_u32 s{sT1}, s{sT1}, s{sW}\ns_lshl_b32 s{sT1}, s{sT1}, 8')
    e(f's_cmp_lt_u32 s{sW}, 2\ns_cselect_b32 s{rT}, s{sB1}, s{rT}\ns_cselect_b32 s{rT+1}, s{sB1+1}, s{rT+1}\ns_cselect_b32 s{rT+2}, 3584, s{rT+2}\ns_cselect_b32 s{sT0}, s{sT1}, s{sT0}')
    e(f's_mov_b32 s{rT+3}, 0x00020000')
    e(f'buffer_load_dword v{pT}, v{vTO}, {sr(rT,4)}, s{sT0} offen')
    for p in range(7):
        e(f's_add_u32 m0, s{sW1K}, {XY + p*8192}\ns_add_u32 s{sT0}, s{sXB}, {p*128}')
        e(f'buffer_load_dwordx4 v{vDX}, {sr(rX,4)}, s{sT0} offen lds', tag=('x', p))
    e(f's_or_b32 s{sNON}, s{sNON}, 1\ns_or_b32 s{sT0}, s{sI}, s{sJ}\ns_or_b32 s{sT0}, s{sT0}, s{sW}\ns_cmp_lg_u32 s{sT0}, 0\ns_cbranch_scc1 L_nononce')
    e(f'v_mov_b32 v{c}, 0\nv_mov_b32 v{d}, s{sNON}')
    e.raw(f'  global_store_dword v{c}, v{d}, s[{sDBG}:{sDBG+1}] sc1')
    e('L_nononce:')
    e(f's_cmp_ge_u32 s{sW}, 4\ns_cselect_b32 s{sBRE}, s{sBIM}, s{sBRE}\ns_cselect_b32 s{sBRE+1}, s{sBIM+1}, s{sBRE+1}')
    srd(rB, sBRE, 448 * 896)
    e(f's_lshr_b32 s{sT0}, s{sW}, 2')
    e(f'v_and_b32 v{a}, 6, v{r_}\nv_add_u32 v{a}, s{sT0}, v{a}\nv_xor_b32 v{a}, v{a}, v{c_}\nv_lshl_add_u32 v{vDB}, v{a}, 4, v{b}')
    e(f's_and_b32 s{sT0}, s{sW}, 3\ns_lshl_b32 s{sT0}, s{sT0}, 4\ns_lshl_b32 s{sT1}, s{sJ}, 6\ns_add_u32 s{sT0}, s{sT0}, s{sT1}\ns_mul_i32 s{sBB}, s{sT0}, 896')
    chunks = []
    for p in range(7): chunks.append(('B', p))
    for hf in range(2):
        for p in range(7): chunks.append(('W1', hf, p))
    for ss in range(3):
        for kb in range(4): chunks.append(('W2', ss, kb))
        chunks.append(('C', ss, 0)); chunks.append(('C', ss, 1))
    chunks += [('OW', 0), ('OW', 1), ('OC',)]
    NCH = len(chunks)
    def dma_ops(n):
        if n >= NCH: return []
        ch = chunks[n]; out = []
        for ee in range(2):
            m0 = f's_add_u32 m0, s{sW1K}, {RING + (n % NSLOT)*SLOT + ee*8192}'
            if ch[0] == 'B':
                so = f's_add_u32 s{sT0}, s{sBB}, {ee*8*896 + ch[1]*128}'; v, r = vDB, rB
            elif ch[0] == 'W1':
                so = f's_add_u32 s{sT0}, s{sW1B}, {ch[2]*64*3584 + ch[1]*256 + ee*128}'; v, r = vDW1, rW1
            elif ch[0] == 'W2':
                so = f's_add_u32 s{sT0}, s{sW2B[2*ch[1]+ee]}, {ch[2]*64*896}'; v, r = vDW2, rW2
            elif ch[0] == 'C':
                so = f's_mov_b32 s{sT0}, s{sCB[2*ch[1]+ee]}'; v, r = vDC, (rCRE, rCIM)[ch[2]]
            elif ch[0] == 'OW':
                so = f's_add_u32 s{sT0}, s{sW2B[6]}, {(2*ch[1]+ee)*64*896}'; v, r = vDW2, rW2
            else:
                so = f's_mov_b32 s{sT0}, s{sCB[6]}'; v, r = vDC, (rCRE, rCIM)[ee]
            out.append([m0, so, (f'buffer_load_dwordx4 v{v}, {sr(r,4)}, s{sT0} offen lds', ('c', n))])
        return out
    def put(op):
        if isinstance(op, list):
            for o in op: put(o)
        elif isinstance(op, tuple): e(op[0], tag=op[1])
        elif callable(op): op()
        else: e(op)
    for n in range(NSLOT): put(dma_ops(n))
    srd(rW1, sW1, 448 * 3584); srd(rW2, sW2, 1792 * 896); srd(rCRE, sCRE, 448 * 896); srd(rCIM, sCIM, 448 * 896)
    srd(rWS, sWS, 0x10000000); srd(rOUT, sOUT, 2048 * 1792)
    e(f's_lshl_b32 s{sT0}, s{sJ}, 15\ns_add_u32 s{rCAR}, s{sWS}, s{sT0}\ns_addc_u32 s{rCAR+1}, s{sWS+1}, 0\ns_mov_b32 s{rCAR+2}, 32768\ns_mov_b32 s{rCAR+3}, 0x00020000')
    e(f'v_and_b32 v{a}, 2, v{r_}\nv_lshlrev_b32 v{a}, 1, v{a}\nv_xor_b32 v{a}, v{a}, v{c_}\nv_lshlrev_b32 v{a}, 4, v{a}')
    e(f'v_add_u32 v{vDW2}, v{a}, v{b}\nv_mul_u32_u24 v{b}, 3584, v{r_}\nv_add_u32 v{vDW1}, v{a}, v{b}')
    e(f's_mul_i32 s{sW1B}, s{sW}, {8*3584}\ns_lshl_b32 s{sT0}, s{sJ}, 9\ns_add_u32 s{sW1B}, s{sW1B}, s{sT0}')
    NL = 1792 // (NSH * 8)
    vTW = T[17]
    e(f's_and_b32 s{sT0}, s{sI}, {NSH-1}\ns_lshl_b32 s{sT0}, s{sT0}, 3\ns_add_u32 s{sT0}, s{sT0}, s{sW}\ns_mul_i32 s{sT0}, s{sT0}, {NL}')
    e(f'v_add_u32 v{vTW}, s{sT0}, v{L}\nv_cmp_gt_u32 vcc, {NL}, v{L}')
    e(f'v_lshrrev_b32 v{a}, 2, v{vTW}\nv_mul_u32_u24 v{a}, 3584, v{a}\nv_and_b32 v{b}, 3, v{vTW}\nv_lshl_add_u32 v{a}, v{b}, 7, v{a}\nv_cndmask_b32 v{a}, -16, v{a}, vcc')
    e(f's_lshl_b32 s{sT0}, s{sJ}, 9')
    e(f'buffer_load_dword v{vJ}, v{a}, {sr(rW1,4)}, s{sT0} offen', tag='pf'); e.st.vm[-1]['w'] = set()
    e(f's_lshl_b32 s{sT1}, s{sJ}, 8\ns_lshl_b32 s{sT0}, s{sW}, 3\ns_add_u32 s{sT1}, s{sT1}, s{sT0}\ns_mul_i32 s{rT}, s{sT1}, 896')
    e(f's_mul_i32 s{rT+1}, s{sT0}, 896\ns_lshl_b32 s{sT0}, s{sJ}, 7\ns_add_u32 s{rT+1}, s{rT+1}, s{sT0}')
    e(f's_mul_i32 s{rT+2}, s{sI}, {42*PSLAB}\ns_add_u32 s{rT+2}, s{rT+2}, {WS_EXCH}')
    e(f's_mul_i32 s{sGA}, s{sJ}, {6*PSLAB}\ns_add_u32 s{sGA}, s{sGA}, s{rT+2}\ns_mov_b32 s{s4096}, 4096')
    e(f's_mov_b32 s{sT1}, s{sJ}')
    for s in range(7):
        e(f's_add_u32 s{sT1}, s{sT1}, 1\ns_cmp_ge_u32 s{sT1}, 7\ns_cselect_b32 s{sT1}, 0, s{sT1}')
        e(f's_lshl_b32 s{sT0}, s{sT1}, 7\ns_add_u32 s{sW2B[s]}, s{rT}, s{sT0}')
        e(f's_mul_i32 s{sT0}, s{sT1}, {64*896}\ns_add_u32 s{sCB[s]}, s{rT+1}, s{sT0}')
        if s < 6:
            e(f's_mul_i32 s{sT0}, s{sT1}, {6*PSLAB}\ns_add_u32 s{sT0}, s{sT0}, {s*PSLAB}\ns_add_u32 s{sEX[s]}, s{rT+2}, s{sT0}')
    sQ, sTB = rT, rT + 1
    e(f's_lshr_b32 s{sQ}, s{sW}, 1\ns_and_b32 s{sTB}, s{sW}, 1')
    e(f'v_bfe_u32 v{a}, v{n_}, 1, 3\nv_xor_b32 v{a}, v{a}, v{h_}')
    e(f's_lshl_b32 s{sT0}, s{sTB}, 12\nv_lshlrev_b32 v{b}, 7, v{n_}\nv_add_u32 v{b}, s{sT0}, v{b}')
    e(f'v_bfe_u32 v{c}, v{n_}, 2, 2\nv_lshlrev_b32 v{c}, 1, v{c}\nv_and_b32 v{d}, 1, v{n_}\nv_or_b32 v{c}, v{c}, v{d}\nv_xor_b32 v{c}, v{c}, v{h_}')
    t1, t2 = T[18], T[19]
    e(f'v_lshlrev_b32 v{d}, 12, v{d}\nv_lshrrev_b32 v{t1}, 4, v{n_}\nv_lshl_add_u32 v{d}, v{t1}, 13, v{d}\nv_bfe_u32 v{t1}, v{n_}, 1, 3\nv_lshl_add_u32 v{d}, v{t1}, 7, v{d}')
    e(f's_lshl_b32 s{sT0}, s{sQ}, 10\ns_add_u32 s{sT0}, s{sT0}, {RING}\nv_add_u32 v{d}, s{sT0}, v{d}')
    for u in range(4):
        e(f's_xor_b32 s{sT0}, s{sQ}, {u}\ns_lshl_b32 s{sT0}, s{sT0}, 1')
        e(f'v_xor_b32 v{t1}, s{sT0}, v{a}\nv_lshl_add_u32 v{RX[u]}, v{t1}, 4, v{b}')
        e(f'v_xor_b32 v{t1}, s{sT0}, v{c}\nv_lshl_add_u32 v{RA[u]}, v{t1}, 4, v{d}\nv_add_u32 v{RA[4+u]}, 0x10000, v{RA[u]}')
    r4, g16 = T[18], T[19]
    e(f'v_bfe_u32 v{r4}, v{L}, 2, 2\nv_bfe_u32 v{g16}, v{L}, 4, 1')
    e(f's_and_b32 s{sT0}, s{sQ}, 1\nv_lshrrev_b32 v{a}, 1, v{r4}\nv_xor_b32 v{a}, s{sT0}, v{a}\nv_lshlrev_b32 v{a}, 6, v{a}')
    e(f'v_lshl_add_u32 v{a}, v{r4}, 7, v{a}\nv_lshl_add_u32 v{a}, v{g16}, 5, v{a}\nv_and_b32 v{b}, 3, v{L}\nv_lshl_add_u32 v{a}, v{b}, 3, v{a}\nv_lshl_add_u32 v{a}, v{h_}, 10, v{a}')
    e(f's_lshr_b32 s{sT0}, s{sQ}, 1\ns_lshl_b32 s{sT0}, s{sT0}, 13\ns_add_u32 s{sT0}, s{sT0}, {RING}\nv_add_u32 v{RT[0]}, s{sT0}, v{a}\nv_add_u32 v{RT[1]}, 0x10000, v{RT[0]}')
    e(f's_mul_i32 s{sT0}, s{sTB}, 28672\nv_lshlrev_b32 v{a}, 4, v{L}\nv_add_u32 v{vLIN}, s{sT0}, v{a}')
    vGW = T[20]
    e(f's_lshl_b32 s{sT0}, s{sQ}, 5\ns_add_u32 s{sT0}, s{sT0}, {GW}\nv_lshlrev_b32 v{a}, 4, v{h_}\nv_add_u32 v{vGW}, s{sT0}, v{a}')
    e(f's_cmp_ge_u32 s{sW}, 4\ns_cbranch_scc1 L_tabraw')
    e(f'v_and_b32 v{b}, 0xffff0000, v{pT}\nv_lshlrev_b32 v{a}, 16, v{pT}')
    e(f's_lshl_b32 s{sT0}, s{sW}, 9\ns_add_u32 s{sT0}, s{sT0}, {TB1}\nv_lshlrev_b32 v{c}, 3, v{L}\nv_add_u32 v{c}, s{sT0}, v{c}')
    assert b == a + 1 and a % 2 == 0
    e(f'ds_write_b64 v{c}, {vr(a,2)}\ns_branch L_tabdone')
    e('L_tabraw:')
    e(f's_lshl_b32 s{sT0}, s{sW}, 8\ns_add_u32 s{sT0}, s{sT0}, {GW - 1024}\nv_add_u32 v{c}, s{sT0}, v{vTO}')
    e.st.lg.pop()
    e(f'ds_write_b32 v{c}, v{pT}')
    e('L_tabdone:')
    LOG2E = 1.4426950408889634
    lr, li, dt = pL, pI, pD
    e(f'v_lshlrev_b32 v{lr}, 16, v{lr}\nv_lshlrev_b32 v{li}, 16, v{li}\nv_lshlrev_b32 v{dt}, 16, v{dt}')
    e(f'v_mul_f32 v{dt}, {fl(LOG2E)}, v{dt}\nv_exp_f32 v{dt}, v{dt}\nv_cvt_pk_bf16_f32 v{dt}, v{dt}, v{dt}\nv_lshlrev_b32 v{dt}, 16, v{dt}')
    e(f'v_mul_f32 v{a}, v{dt}, v{lr}\nv_mul_f32 v{b}, v{dt}, v{li}\nv_mul_f32 v{a}, {fl(LOG2E)}, v{a}\nv_exp_f32 v{a}, v{a}')
    e(f'v_mul_f32 v{b}, {fl(1/(2*math.pi))}, v{b}\nv_rndne_f32 v{c}, v{b}\nv_sub_f32 v{b}, v{b}, v{c}\nv_cos_f32 v{c}, v{b}\nv_sin_f32 v{d}, v{b}')
    e(f'v_mul_f32 v{vLr}, v{a}, v{c}\nv_mul_f32 v{d}, v{a}, v{d}')
    e(f'v_mul_f32 v{a}, v{lr}, v{lr}\nv_fmac_f32 v{a}, v{li}, v{li}\nv_rcp_f32 v{a}, v{a}\nv_add_f32 v{b}, -1.0, v{vLr}')
    e(f'v_mul_f32 v{c}, v{b}, v{lr}\nv_fmac_f32 v{c}, v{d}, v{li}\nv_mul_f32 v{c}, v{c}, v{a}')
    e(f'v_mul_f32 v{vA2}, v{b}, v{li}\nv_fma_f32 v{vA2}, -v{d}, v{lr}, v{vA2}\nv_mul_f32 v{vA2}, v{vA2}, v{a}')
    e(f'v_lshlrev_b32 v{a}, 31, v{n_}\nv_xor_b32 v{vA1}, v{a}, v{c}\nv_xor_b32 v{vLi}, v{a}, v{d}')
    def sq(dr, di, sr_, si_):
        e(f'v_mul_f32 v{a}, v{si_}, v{si_}\nv_mul_f32 v{b}, v{sr_}, v{si_}\nv_fma_f32 v{dr}, v{sr_}, v{sr_}, -v{a}\nv_add_f32 v{di}, v{b}, v{b}')
    sq(vP16r, vP16i, vLr, vLi)
    for _ in range(3): sq(vP16r, vP16i, vP16r, vP16i)
    sq(vP32r, vP32i, vP16r, vP16i); sq(vP64r, vP64i, vP32r, vP32i); sq(vP512r, vP512i, vP64r, vP64i)
    for _ in range(2): sq(vP512r, vP512i, vP512r, vP512i)
    e(f'v_cmp_lt_u32 vcc, 31, v{L}\nv_cndmask_b32 v{vP16r}, 1.0, v{vP16r}, vcc\nv_cndmask_b32 v{vP16i}, 0, v{vP16i}, vcc')
    e(f's_cmp_eq_u32 s{sTB}, 1\ns_cselect_b64 vcc, -1, 0\nv_cndmask_b32 v{vP32r}, 1.0, v{vP32r}, vcc\nv_cndmask_b32 v{vP32i}, 0, v{vP32i}, vcc')
    sS, sQ2, sG = T[0], T[1], T[2]
    gw = [T[4], T[8]]
    ones = T[3]
    e(f'v_mov_b32 v{sS}, 0\nv_mov_b32 v{sQ2}, 0\nv_mov_b32 v{sG}, 0\nv_mov_b32 v{ones}, 0x3f803f80')
    for grp in ((0, 1), (2, 3), (4, 5), (6,)):
        e.wait_tag(('x', grp[-1]), lg=0); e('s_barrier')
        if grp[0] == 0: stamp()
        for k, p in enumerate(grp):
            e(f'ds_read_b128 {vr(X(4*p),4)}, v{RX[0]} offset:{p*8192}\nds_read_b128 {vr(gw[k],4)}, v{vGW} offset:{p*128}')
        for p in grp:
            for u in range(1, 4): e(f'ds_read_b128 {vr(X(4*p+u),4)}, v{RX[u]} offset:{p*8192}')
        for k, p in enumerate(grp):
            for t in range(4):
                xr = X(4 * p) + t
                e(f'v_dot2c_f32_bf16 v{sS}, v{xr}, v{ones}\nv_dot2c_f32_bf16 v{sQ2}, v{xr}, v{xr}\nv_dot2c_f32_bf16 v{sG}, v{xr}, v{gw[k]+t}')
    g2 = T[4]
    e(f'v_mov_b32 v{g2}, v{sG}\nv_permlane32_swap_b32 v{sS}, v{sQ2}\nv_permlane32_swap_b32 v{sG}, v{g2}')
    e(f'v_add_f32 v{sS}, v{sS}, v{sQ2}\nv_add_f32 v{sQ2}, v{sG}, v{g2}')
    vST = T[5]
    e(f's_lshl_b32 s{sT0}, s{sTB}, 11\ns_add_u32 s{sT0}, s{sT0}, {ST}\nv_and_b32 v{vST}, 31, v{L}\nv_lshlrev_b32 v{vST}, 4, v{vST}\nv_add_u32 v{vST}, s{sT0}, v{vST}')
    e(f's_lshl_b32 s{sT0}, s{sQ}, 9\nv_lshrrev_b32 v{T[6]}, 5, v{L}\nv_lshlrev_b32 v{T[6]}, 3, v{T[6]}\nv_add3_u32 v{T[6]}, v{T[6]}, v{vST}, s{sT0}')
    e(f'ds_write_b64 v{T[6]}, {vr(sS,2)}')

    fill = {}
    def addfill(n, ops): fill.setdefault(n, []).extend(ops)
    def spread(ops, ns):
        k = len(ns); L_ = len(ops); pos = 0
        for idx, n in enumerate(ns):
            nxt = (L_ * (idx + 1)) // k
            addfill(n, ops[pos:nxt]); pos = nxt
    st = []
    for q in range(4): st.append(f'ds_read_b128 {vr(accA+4*q,4)}, v{vST} offset:{q*512}')
    for k in (0, 1, 2):
        st += [f'v_add_f32 v{accA+k}, v{accA+k}, v{accA+4+k}', f'v_add_f32 v{accA+8+k}, v{accA+8+k}, v{accA+12+k}', f'v_add_f32 v{accA+k}, v{accA+k}, v{accA+8+k}']
    m_, z_, q_ = accA, accA + 1, accA + 2
    t3, t4 = accA + 4, accA + 5
    st += [f'v_mul_f32 v{m_}, {fl(1/448)}, v{m_}', f'v_mul_f32 v{t3}, v{m_}, v{m_}', f'v_mul_f32 v{q_}, {fl(1/448)}, v{q_}', f'v_sub_f32 v{q_}, v{q_}, v{t3}',
           f'v_max_f32 v{q_}, 0, v{q_}', f'v_add_f32 v{q_}, {fl(1e-5)}, v{q_}', f'v_rsq_f32 v{vR}, v{q_}',
           f'v_mul_f32 v{z_}, {fl(LOG2E)}, v{z_}', f'v_min_f32 v{z_}, {fl(115.0)}, v{z_}', f'v_max_f32 v{z_}, {fl(-115.0)}, v{z_}',
           f'v_mul_f32 v{vNMR}, v{m_}, v{vR}', f'v_exp_f32 v{t3}, v{z_}', f'v_exp_f32 v{t4}, -v{z_}', f'v_sub_f32 v{vNMR}, 0, v{vNMR}',
           f'v_add_f32 v{vIG}, 1.0, v{t3}', f'v_add_f32 v{t4}, 1.0, v{t4}', f'v_rcp_f32 v{vG}, v{t4}']
    ga, gb = accA + 8, accA + 9
    st += [f'v_bfe_u32 v{ga}, v{L}, 2, 1', f'v_lshlrev_b32 v{ga}, 4, v{ga}', f'v_bfe_u32 v{gb}, v{L}, 3, 2', f'v_lshl_add_u32 v{ga}, v{gb}, 2, v{ga}',
           f'v_and_b32 v{gb}, 3, v{L}', f's_lshl_b32 s{sT1}, s{sTB}, 5', f'v_add3_u32 v{ga}, v{ga}, v{gb}, s{sT1}', f'v_lshlrev_b32 v{ga}, 2, v{ga}', f'v_add_u32 v{ga}, {G2T}, v{ga}',
           f'v_add_f32 v{gb}, v{vG}, v{vG}', f'ds_write_b32 v{ga}, v{gb}']
    addfill(0, st)
    vYW = T[7]
    nm = [f's_lshl_b32 s{sT1}, s{sQ}, 10', f'v_add_u32 v{vYW}, s{sT1}, v{vLIN}']
    for p in range(7):
        yb = accB + 4 * (p & 1); tb_ = accB + 8
        for t in range(4):
            xr = X(4 * p) + t; lo, hi = tb_ + 2 * (t & 1), tb_ + 2 * (t & 1) + 1
            nm += [f'v_lshlrev_b32 v{lo}, 16, v{xr}', f'v_and_b32 v{hi}, 0xffff0000, v{xr}', f'v_fma_f32 v{lo}, v{lo}, v{vR}, v{vNMR}', f'v_fma_f32 v{hi}, v{hi}, v{vR}, v{vNMR}',
                   f'v_cvt_pk_bf16_f32 v{yb+t}, v{lo}, v{hi}']
        nm.append(f'ds_write_b128 v{vYW}, {vr(yb,4)} offset:{p*4096}')
    spread(nm, cfg.get('norm_iv', [1, 2, 3, 4, 5]))
    vNO = T[8]
    NL2 = 1792 // (NSH * 8); NLC = 448 // (NSH * 4) if NSH == 16 else 4
    ta, tb2 = T[9], T[10]
    def nowr(): e.st.vm[-1]['w'] = set()
    lt = [f'v_mul_u32_u24 v{ta}, {65536//7+1}, v{vTW}', f'v_lshrrev_b32 v{ta}, 16, v{ta}', f'v_mul_u32_u24 v{tb2}, 7, v{ta}', f'v_sub_u32 v{tb2}, v{vTW}, v{tb2}',
          f'v_mul_u32_u24 v{ta}, 896, v{ta}', f'v_lshl_add_u32 v{ta}, v{tb2}, 7, v{ta}', f'v_cmp_gt_u32 vcc, {NL2}, v{L}', f'v_cndmask_b32 v{ta}, -16, v{ta}, vcc',
          f's_mul_i32 s{sT1}, s{sJ}, {256*896}', (f'buffer_load_dword v{vJ}, v{ta}, {sr(rW2,4)}, s{sT1} offen', 'pf'), nowr]
    NC = -(-448 // (NSH * 8))
    lt += [f's_and_b32 s{sT1}, s{sI}, {NSH-1}', f's_lshl_b32 s{sT1}, s{sT1}, 3', f's_add_u32 s{sT1}, s{sT1}, s{sW}', f's_mul_i32 s{sT1}, s{sT1}, {NC}',
           f'v_add_u32 v{ta}, s{sT1}, v{L}', f'v_mul_u32_u24 v{ta}, 896, v{ta}', f'v_cmp_gt_u32 vcc, {NC}, v{L}', f'v_cndmask_b32 v{ta}, -16, v{ta}, vcc',
           f's_lshl_b32 s{sT1}, s{sJ}, 7', (f'buffer_load_dword v{vJ}, v{ta}, {sr(rCRE,4)}, s{sT1} offen', 'pf'), nowr,
           (f'buffer_load_dword v{vJ}, v{ta}, {sr(rCIM,4)}, s{sT1} offen', 'pf'), nowr]
    lt += [f'v_mov_b32 v{tb2}, 0', (f'global_load_dword v{vNO}, v{tb2}, s[{sDBG}:{sDBG+1}] sc1', 'non')]
    addfill(cfg.get('touch_iv', 2), lt)
    def nonce_check():
        e(f'v_readfirstlane_b32 s{sNON}, v{vNO}')
        e(f's_mov_b32 s{sCNT}, 0x40000')
        e('L_nonce:')
        e(f's_cmp_lg_u32 s{sNON}, 0\ns_cbranch_scc1 L_nonce_ok\ns_sub_u32 s{sCNT}, s{sCNT}, 1\ns_cbranch_scc1 L_nonce_ok')
        e.raw(f'  s_sleep 1\n  global_load_dword v{vNO}, v{tb2}, s[{sDBG}:{sDBG+1}] sc1\n  s_waitcnt vmcnt(0)\n  v_readfirstlane_b32 s{sNON}, v{vNO}\n  s_nop 4\n  s_branch L_nonce')
        e('L_nonce_ok:')
    addfill(6, [nonce_check])
    vB1 = T[12]
    def cinit(acc, hf):
        o = []
        if hf == 0:
            o += [f's_lshl_b32 s{sT1}, s{sQ}, 7', f's_add_u32 s{sT1}, s{sT1}, {TB1}', f'v_lshrrev_b32 v{vB1}, 5, v{L}', f'v_lshlrev_b32 v{vB1}, 4, v{vB1}', f'v_add_u32 v{vB1}, s{sT1}, v{vB1}']
        o += [f'ds_read_b128 {vr(acc+4*g,4)}, v{vB1} offset:{hf*512 + g*32}' for g in range(4)]
        return o
    addfill(6, cinit(accA, 0)); addfill(12, cinit(accB, 1))
    sc = []
    for t in range(16):
        tm = T[13 + (t & 1)]
        sc += [f'v_mul_f32_dpp v{tm}, v{accS+t}, v{vA2} {DPP}', f'v_fma_f32 v{accS+t}, v{vA1}, v{accS+t}, v{tm}']
    addfill(8, sc)
    sc = []
    prev = accS
    for t in range(1, 16):
        cur = (vTa, vTb)[t & 1]
        sc += [f'v_fma_f32 v{cur}, v{vLr}, v{prev}, v{accS+t}', f'v_fmac_f32_dpp v{cur}, v{prev}, v{vLi} {DPP}']
        prev = cur
    S_ = prev
    vSA = T[13]
    sc += [f'v_mov_b32 v{vS0}, 0', f'v_permlane32_swap_b32 v{vS0}, v{S_}',
           f'v_fmac_f32 v{S_}, v{vP16r}, v{vS0}', f'v_fmac_f32_dpp v{S_}, v{vS0}, v{vP16i} {DPP}']
    sc += [f's_lshl_b32 s{sT1}, s{sW}, 8', f's_add_u32 s{sT1}, s{sT1}, {ST + 2048}', f'v_lshlrev_b32 v{vSA}, 2, v{L}', f'v_add_u32 v{vSA}, s{sT1}, v{vSA}', f'ds_write_b32 v{vSA}, v{S_}']
    spread(sc, [9, 10])
    vPB = T[14]; vCA = T[15]
    sc = [f's_and_b32 s{sT1}, s{sW}, 6', f's_lshl_b32 s{sT1}, s{sT1}, 8', f's_add_u32 s{sT1}, s{sT1}, {ST + 2048 + 128}',
          f'v_and_b32 v{vSA}, 31, v{L}', f'v_lshlrev_b32 v{vPB}, 3, v{vSA}', f'v_lshlrev_b32 v{vSA}, 2, v{vSA}', f'v_add_u32 v{vSA}, s{sT1}, v{vSA}', f'ds_read_b32 v{vSTB}, v{vSA}',
          f's_lshl_b32 s{sT1}, s{sQ}, 8', f'v_add_u32 v{vPB}, s{sT1}, v{vPB}',
          f's_lshl_b32 s{sT1}, s{sTB}, 4', f's_sub_u32 s{sT1}, s{sT1}, s{sI}', f's_add_u32 s{sT1}, s{sT1}, 32', f's_lshl_b32 s{sT1}, s{sT1}, 10',
          f'v_lshrrev_b32 v{vCA}, 5, v{L}', f'v_lshlrev_b32 v{vCA}, 13, v{vCA}', f'v_add3_u32 v{vCA}, v{vCA}, v{vPB}, s{sT1}',
          f's_sub_u32 s{sT1}, 31, s{sI}', f's_lshl_b32 s{sT1}, s{sT1}, 10', f'v_add_u32 v{vPB}, s{sT1}, v{vPB}',
          [f's_cmp_eq_u32 s{sTB}, 1', f's_cselect_b32 s{sT1}, 31, 64'], f'v_cmp_lt_u32 vcc, s{sT1}, v{L}', f'v_cndmask_b32 v{vPB}, -16, v{vPB}, vcc',
          [f's_cmp_eq_u32 s{sTB}, 1', f's_cselect_b64 vcc, -1, 0'], f'v_cndmask_b32 v{vSTB}, 0, v{vSTB}, vcc',
          f'v_fmac_f32 v{S_}, v{vP32r}, v{vSTB}', f'v_fmac_f32_dpp v{S_}, v{vSTB}, v{vP32i} {DPP}',
          f'v_mov_b32 v{vTa}, v{S_}', f'v_mov_b32 v{vTb}, s{sNON}',
          (f'buffer_store_dwordx2 {vr(vTa,2)}, v{vPB}, {sr(rCAR,4)}, 0 offen sc1', 'pub')]
    addfill(11, sc)
    K0 = -2.0 * math.sqrt(2.0 / math.pi) * LOG2E; K1 = K0 * 0.044715
    sK0, sK1 = 26, 27
    vHW = T[16]
    def gelu(acc, hf, tmp):
        o = []
        W = len(tmp)
        for base in range(0, 16, W):
            idx = list(range(base, base + W))
            o += [f'v_mul_f32 v{tmp[k-base]}, v{acc+k}, v{acc+k}' for k in idx]
            o += [f'v_fma_f32 v{tmp[k-base]}, v{tmp[k-base]}, s{sK1}, v{vK0}' for k in idx]
            o += [f'v_mul_f32 v{tmp[k-base]}, v{tmp[k-base]}, v{acc+k}' for k in idx]
            o += [f'v_exp_f32 v{tmp[k-base]}, v{tmp[k-base]}' for k in idx]
            o += [f'v_fma_f32 v{tmp[k-base]}, v{tmp[k-base]}, v{vIG}, v{vIG}' for k in idx]
            o += [f'v_rcp_f32 v{tmp[k-base]}, v{tmp[k-base]}' for k in idx]
            o += [f'v_mul_f32 v{tmp[k-base]}, v{tmp[k-base]}, v{acc+k}' for k in idx]
            o += [f'v_cvt_pk_bf16_f32 v{acc+k//2}, v{tmp[k-base]}, v{tmp[k-base+1]}' for k in idx[::2]]
            if (base + W) % 8 == 0:
                u = (base + W) // 8 - 1
                o.append(f'ds_write_b128 v{vHW}, {vr(acc+4*u,4)} offset:{hf*8192 + u*1024}')
        return o
    vK0 = vA1
    addfill(12, [f's_mov_b32 s{sK1}, {fl(K1)}', f'v_mov_b32 v{vK0}, {fl(K0)}',
                 f's_lshl_b32 s{sT1}, s{sTB}, 14', f'v_lshlrev_b32 v{vHW}, 4, v{L}', f'v_add_u32 v{vHW}, s{sT1}, v{vHW}'])
    gtmp = [T[0], T[1], T[2], T[3]]
    ga_ops = gelu(accA, 0, gtmp)
    addfill(14, [f'v_mov_b32 v{vLIN}, v{vHW}', f's_lshl_b32 s{sT1}, s{sQ}, 11', f'v_add_u32 v{vHW}, s{sT1}, v{vHW}'])
    spread(ga_ops, [15, 16, 17, 18, 19, 20])
    CG = X(0)
    def carry_loads():
        return [(f'buffer_load_dwordx2 {vr(CG+2*k,2)}, v{vCA}, {sr(rCAR,4)}, {"0" if k < 4 else "s%d" % s4096} offen offset:{(k&3)*1024} sc1', 'car') for k in range(8)]
    addfill(cfg.get('carry_iv', 18), carry_loads())
    def carry_check():
        vE, vSum = T[4], T[5]
        e(f's_lshl_b32 s{sT1}, s{sTB}, 4\ns_sub_u32 s{sT1}, s{sI}, s{sT1}\nv_lshrrev_b32 v{vE}, 5, v{L}\nv_lshlrev_b32 v{vE}, 3, v{vE}\nv_sub_u32 v{vE}, s{sT1}, v{vE}')
        e(f'v_med3_i32 v{vE}, v{vE}, 0, 8\nv_mul_lo_u32 v{vE}, v{vE}, s{sNON}\ns_mov_b32 s{sCNT}, 0x10000')
        e.wait_tag('car')
        e('L_car:')
        e(f'v_add3_u32 v{vSum}, v{CG+1}, v{CG+3}, v{CG+5}\nv_add3_u32 v{vSum}, v{vSum}, v{CG+7}, v{CG+9}\nv_add3_u32 v{vSum}, v{vSum}, v{CG+11}, v{CG+13}\nv_add_u32 v{vSum}, v{vSum}, v{CG+15}')
        e(f'v_cmp_ne_u32 vcc, v{vSum}, v{vE}\ns_cbranch_vccz L_car_ok\ns_sub_u32 s{sCNT}, s{sCNT}, 1\ns_cbranch_scc1 L_car_ok')
        e.raw('  s_sleep 1')
        for o in carry_loads(): e.raw('  ' + o[0])
        e.raw('  s_waitcnt vmcnt(0)\n  s_branch L_car')
        e('L_car_ok:')
    hor = []
    prev = CG + 14
    for k in range(6, -1, -1):
        cur = CG + 2 * k
        hor += [f'v_fmac_f32 v{cur}, v{vP64r}, v{prev}', f'v_fmac_f32_dpp v{cur}, v{prev}, v{vP64i} {DPP}']
        prev = cur
    vTG = T[6]
    hor += [f's_lshl_b32 s{sT1}, s{sW}, 8', f's_add_u32 s{sT1}, s{sT1}, {ST}', f'v_lshlrev_b32 v{vTG}, 2, v{L}', f'v_add_u32 v{vTG}, s{sT1}, v{vTG}', f'ds_write_b32 v{vTG}, v{CG}']
    gb_ops = gelu(accB, 1, gtmp)
    mix = []; hi_ = 0
    for k, o in enumerate(gb_ops):
        mix.append(o)
        if k >= 40 and k % 2 == 0 and hi_ < len(hor): mix.append(hor[hi_]); hi_ += 1
    mix += hor[hi_:]
    sDT, sGR = 28, 29
    n2, h2, aa, bb = T[8], T[9], T[10], T[11]
    ad = [f's_bfe_u32 s{sDT}, s{sW}, 0x10001', f's_lshr_b32 s{sGR}, s{sW}, 2',
          f'v_and_b32 v{n2}, 31, v{L}', f'v_lshrrev_b32 v{h2}, 5, v{L}', f'v_bfe_u32 v{aa}, v{n2}, 1, 3', f'v_xor_b32 v{aa}, v{aa}, v{h2}',
          f's_lshl_b32 s{sT1}, s{sGR}, 1', f's_add_u32 s{sT1}, s{sT1}, s{sDT}', f's_lshl_b32 s{sT1}, s{sT1}, 12', f's_add_u32 s{sT1}, s{sT1}, {RING}',
          f'v_lshlrev_b32 v{bb}, 7, v{n2}', f'v_add_u32 v{bb}, s{sT1}, v{bb}']
    for u in range(4):
        ad += [f'v_xor_b32 v{n2}, {2*u}, v{aa}', f'v_lshl_add_u32 v{RA[u]}, v{n2}, 4, v{bb}', f'v_add_u32 v{RA[4+u]}, 0x10000, v{RA[u]}']
    vHR = RX[0]
    ad += [f'v_bfe_u32 v{aa}, v{L}, 2, 2', f'v_lshrrev_b32 v{bb}, 1, v{aa}', f'v_xor_b32 v{bb}, s{sDT}, v{bb}', f'v_lshlrev_b32 v{bb}, 6, v{bb}',
           f'v_lshl_add_u32 v{n2}, v{h2}, 2, v{aa}', f'v_lshl_add_u32 v{bb}, v{n2}, 7, v{bb}', f'v_bfe_u32 v{n2}, v{L}, 4, 1', f'v_lshl_add_u32 v{bb}, v{n2}, 5, v{bb}',
           f'v_and_b32 v{vHR}, 3, v{L}', f'v_lshl_add_u32 v{bb}, v{vHR}, 3, v{bb}', f's_lshl_b32 s{sT1}, s{sGR}, 13', f's_add_u32 s{sT1}, s{sT1}, {RING}',
           f'v_add_u32 v{RT[0]}, s{sT1}, v{bb}', f'v_add_u32 v{RT[1]}, 0x10000, v{RT[0]}',
           f'v_lshl_add_u32 v{aa}, v{h2}, 3, v{aa}', f'v_lshlrev_b32 v{aa}, 6, v{aa}', f'v_lshl_add_u32 v{aa}, v{n2}, 4, v{aa}',
           f'v_and_b32 v{bb}, 1, v{L}', f'v_lshl_add_u32 v{aa}, v{bb}, 5, v{aa}', f'v_bfe_u32 v{bb}, v{L}, 1, 1', f'v_lshl_add_u32 v{aa}, v{bb}, 3, v{aa}',
           f's_lshl_b32 s{sT1}, s{sTB}, 13', f's_add_u32 s{sT1}, s{sT1}, {HH}', f'v_add_u32 v{vHR}, s{sT1}, v{aa}']
    addfill(21, ad)
    post21 = mix[:40] + [carry_check] + mix[40:]

    def reads(n, grp=None):
        ch = chunks[n]; sl = n % NSLOT; hi = sl >= 4; off = (sl - 4 * hi) * SLOT; fb = FB[n & 1]; o = []
        if ch[0] == 'B':
            o = [f'ds_read_b128 {vr(fb+4*u,4)}, v{RA[4*hi+u]} offset:{off}' for u in range(4)]
        elif ch[0] == 'W1':
            for u in range(4):
                if ch[1] == 0: o.append(f'ds_read_b128 {vr(X(4*ch[2]+u),4)}, v{vLIN} offset:{(4*ch[2]+u)*1024}')
                o += [f'ds_read_b64_tr_b16 {vr(fb+4*u+2*t,2)}, v{RT[hi]} offset:{off + u*2048 + t*512}' for t in range(2)]
        elif ch[0] == 'W2':
            for u in range(4):
                if ch[1] == 0: o.append(f'ds_read_b128 {vr(X(4*ch[2]+u),4)}, v{vLIN} offset:{(4*ch[2]+u)*1024}')
                o += [f'ds_read_b64_tr_b16 {vr(fb+4*u+2*t,2)}, v{RT[hi]} offset:{off + (2*u+t)*1024}' for t in range(2)]
        elif ch[0] == 'C':
            for u in range(4):
                if ch[1] == 0:
                    o += [f'ds_read_b64_tr_b16 {vr(X(16+4*ch[2]+u)+2*t,2)}, v{vHR} offset:{(ch[2]*64 + 16*u + 4*t)*64}' for t in range(2)]
                o.append(f'ds_read_b128 {vr(fb+4*u,4)}, v{RA[4*hi+u]} offset:{off}')
        return o
    G2ACC = [accA, accB, accA]
    def mfmas(n):
        ch = chunks[n]; fb = FB[n & 1]; o = []
        for u in range(4):
            f = vr(fb + 4 * u, 4)
            if ch[0] == 'B':
                c_ = '0' if (ch[1] == 0 and u == 0) else vr(accS, 16)
                o.append(f'v_mfma_f32_32x32x16_bf16 {vr(accS,16)}, {vr(X(4*ch[1]+u),4)}, {f}, {c_}')
            elif ch[0] == 'W1':
                acc = (accA, accB)[ch[1]]
                o.append(f'v_mfma_f32_32x32x16_bf16 {vr(acc,16)}, {f}, {vr(X(4*ch[2]+u),4)}, {vr(acc,16)}')
            elif ch[0] == 'W2':
                acc = G2ACC[ch[1]]; c_ = '0' if (ch[2] == 0 and u == 0) else vr(acc, 16)
                o.append(f'v_mfma_f32_32x32x16_bf16 {vr(acc,16)}, {f}, {vr(X(4*ch[2]+u),4)}, {c_}')
            elif ch[0] == 'C':
                acc = G2ACC[ch[1]]
                o.append(f'v_mfma_f32_32x32x16_bf16 {vr(acc,16)}, {f}, {vr(X(16+4*ch[2]+u),4)}, {vr(acc,16)}')
        return o
    def interleave(mf, first, rest):
        k = max(len(mf), 1)
        nf = len(first); nr = len(rest)
        pf = pr = 0
        for g in range(k):
            if mf: put(mf[g])
            tf = min(nf, -(-nf * (g + 1) // max(k - 1, 1)))
            while pf < tf: put(first[pf]); pf += 1
            tr_ = (nr * (g + 1)) // k
            while pr < tr_: put(rest[pr]); pr += 1
    def interval(n, mf, rd, fl_, dma=True, waitn=None):
        e.comment(f'---- interval {n}')
        e.wait_tag(('c', n if waitn is None else waitn), lg=0)
        e('s_barrier')
        first = (dma_ops(n + NSLOT - 1) if (dma and n >= 1) else []) + rd
        interleave(mf, first, fl_)
    for n in range(0, 21):
        interval(n, mfmas(n - 1) if n >= 1 else [], reads(n), fill.get(n, []))
        if n == 7: stamp()
        dumps(n)
    interval(21, mfmas(20), [], fill[21])
    put(post21)
    stamp()
    dumps(21)

    tg = [T[0], T[1], T[2], T[3]]
    p2a = [f's_and_b32 s{sT1}, s{sW}, 6', f's_lshl_b32 s{sT1}, s{sT1}, 8', f's_add_u32 s{sT1}, s{sT1}, {ST}', f'v_and_b32 v{vTG}, 31, v{L}', f'v_lshlrev_b32 v{vTG}, 2, v{vTG}', f'v_add_u32 v{vTG}, s{sT1}, v{vTG}']
    p2a += [f'ds_read_b32 v{tg[G]}, v{vTG} offset:{G*128}' for G in range(4)]
    GT = X(24)
    p2a += [f's_lshl_b32 s{sT1}, s{sTB}, 7', f's_add_u32 s{sT1}, s{sT1}, {G2T}', f'v_lshrrev_b32 v{vTG}, 5, v{L}', f'v_lshlrev_b32 v{vTG}, 6, v{vTG}', f'v_add_u32 v{vTG}, s{sT1}, v{vTG}']
    p2a += [f'ds_read_b128 {vr(GT+4*g,4)}, v{vTG} offset:{g*16}' for g in range(4)]
    for G in (2, 1, 0):
        p2a += [f'v_fmac_f32 v{tg[G]}, v{vP512r}, v{tg[G+1]}', f'v_fmac_f32_dpp v{tg[G]}, v{tg[G+1]}, v{vP512i} {DPP}']
    p2a += [f'v_fmac_f32 v{vSTB}, v{vP32r}, v{tg[0]}', f'v_fmac_f32_dpp v{vSTB}, v{tg[0]}, v{vP32i} {DPP}',
            f'v_fmac_f32 v{vS0}, v{vP16r}, v{vSTB}', f'v_fmac_f32_dpp v{vS0}, v{vSTB}, v{vP16i} {DPP}']
    vHWr = T[4]
    p2a += [f'v_and_b32 v{T[5]}, 1, v{L}', f'v_lshlrev_b32 v{vHWr}, 12, v{T[5]}', f'v_bfe_u32 v{T[5]}, v{L}, 1, 4', f'v_lshl_add_u32 v{vHWr}, v{T[5]}, 6, v{vHWr}',
            f'v_lshrrev_b32 v{T[5]}, 5, v{L}', f'v_lshl_add_u32 v{vHWr}, v{T[5]}, 5, v{vHWr}',
            f's_lshl_b32 s{sT1}, s{sTB}, 3', f's_add_u32 s{sT1}, s{sT1}, s{sQ}', f's_lshl_b32 s{sT1}, s{sT1}, 10', f's_add_u32 s{sT1}, s{sT1}, {HH}', f'v_add_u32 v{vHWr}, s{sT1}, v{vHWr}']
    p2b = []
    prev = vS0
    for t in range(16):
        p2b += [f'v_fmac_f32 v{accS+t}, v{vLr}, v{prev}']
        if t >= 2: p2b += [f'v_mul_f32 v{GT+t-2}, v{GT+t-2}, v{accS+t-2}']
        p2b += [f'v_fmac_f32_dpp v{accS+t}, v{prev}, v{vLi} {DPP}']
        if t >= 3 and (t - 3) % 2 == 0:
            k = t - 3; p2b += [f'v_cvt_pk_bf16_f32 v{GT+k//2}, v{GT+k}, v{GT+k+1}']
        prev = accS + t
    p2b += [f'v_mul_f32 v{GT+14}, v{GT+14}, v{accS+14}', f'v_mul_f32 v{GT+15}, v{GT+15}, v{accS+15}', f'v_cvt_pk_bf16_f32 v{GT+7}, v{GT+14}, v{GT+15}']
    p2b += [f'ds_write_b128 v{vHWr}, {vr(GT,4)}', f'ds_write_b128 v{vHWr}, {vr(GT+4,4)} offset:16']
    SG = T[8]
    assert SG % 4 == 0
    vEX = T[20]
    stg = [f'v_mov_b32 v{SG+3}, s{sNON}', f'v_mov_b32 v{SG+7}, s{sNON}', f'v_mov_b32 v{SG+11}, s{sNON}', f'v_mov_b32 v{SG+10}, 0',
           f's_and_b32 s{sT1}, s{sW}, 3', f's_mul_i32 s{sT1}, s{sT1}, 3072', f'v_lshlrev_b32 v{vEX}, 4, v{L}', f'v_add_u32 v{vEX}, s{sT1}, v{vEX}']
    SLOTS = [0, 1, 2, 4, 5, 6, 8, 9]
    def send(acc, s):
        o = []
        for k in range(8):
            o.append(f'v_cvt_pk_bf16_f32 v{SG+SLOTS[k]}, v{acc+2*k}, v{acc+2*k+1}')
            if k in (2, 5, 7):
                g = (2, 5, 7).index(k)
                o.append((f'buffer_store_dwordx4 {vr(SG+4*g,4)}, v{vEX}, {sr(rWS,4)}, s{sEX[s]} offen offset:{g*1024} sc1', 'snd'))
        return o
    def gather_loads(s, G, pre=True):
        o = [f's_add_u32 s{sT1}, s{sGA}, {s*PSLAB}'] if pre else []
        return o + [(f'buffer_load_dwordx4 {vr(G+4*g,4)}, v{vEX}, {sr(rWS,4)}, s{sT1} offen offset:{g*1024} sc1', ('ga', s)) for g in range(3)]
    lab = [0]
    def gather_check(ss_, Gs):
        def f():
            lab[0] += 1; l = lab[0]; vb = T[21]
            e(f's_mov_b32 s{sCNT}, 0x10000')
            for s in ss_: e.wait_tag(('ga', s))
            e(f'L_ga{l}:')
            first = True
            for G in Gs:
                if first: e(f'v_bitop3_b32 v{vb}, v{G+3}, v{G+7}, s{sNON} bitop3:0x7e')
                else:
                    e(f'v_bitop3_b32 v{vb}, v{G+3}, s{sNON}, v{vb} bitop3:0xbe\nv_bitop3_b32 v{vb}, v{G+7}, s{sNON}, v{vb} bitop3:0xbe')
                e(f'v_bitop3_b32 v{vb}, v{G+11}, s{sNON}, v{vb} bitop3:0xbe')
                first = False
            e(f'v_cmp_ne_u32 vcc, 0, v{vb}\ns_cbranch_vccz L_ga{l}_ok\ns_sub_u32 s{sCNT}, s{sCNT}, 1\ns_cbranch_scc1 L_ga{l}_ok')
            for s, G in zip(ss_, Gs):
                for o in gather_loads(s, G): e.raw('  ' + (o if isinstance(o, str) else o[0]))
            e.raw(f'  s_waitcnt vmcnt(0)\n  s_branch L_ga{l}')
            e(f'L_ga{l}_ok:')
        return f
    def accum(G, first):
        o = []
        for k in range(8):
            g = G + SLOTS[k]
            if first:
                o += [f'v_lshlrev_b32 v{accS+2*k}, 16, v{g}', f'v_and_b32 v{accS+2*k+1}, 0xffff0000, v{g}']
            else:
                o += [f'v_lshlrev_b32 v{T[22]}, 16, v{g}', f'v_and_b32 v{g}, 0xffff0000, v{g}', f'v_add_f32 v{accS+2*k}, v{accS+2*k}, v{T[22]}', f'v_add_f32 v{accS+2*k+1}, v{accS+2*k+1}, v{g}']
        return o

    e(f's_cmp_ge_u32 s{sW}, 4\ns_cbranch_scc1 L_grpB')
    st0 = e.st.clone(); ns0 = nstamp[0]
    for grp in range(2):
        if grp == 1:
            e('L_grpB:'); e.st = st0; nstamp[0] = ns0
        fill = {}
        addfill('21b', p2a + stg)
        spread(p2b, [22, 23, 24])
        addfill(28, send(accA, grp))
        addfill(34, send(accB, 2 + grp))
        GL = X(24)
        addfill(cfg.get('ga0_iv', 33), gather_loads(grp, GL))
        spread([gather_check([grp], [GL])] + accum(GL, True), [36])
        e.wait_lg(0); e('s_barrier')
        interleave([], reads(21), fill['21b'])
        dumps('21b')
        if grp == 1:
            vOA, vXA = RX[1], RX[2]
            XL = F0
        for n in range(22, 39):
            interval(n, mfmas(n - 1), reads(n), fill.get(n, []))
            dumps(n)
        if grp == 0:
            def own_reads(n, ee, fb):
                sl = n % NSLOT; hi = sl >= 4; off = (sl - 4 * hi) * SLOT + ee * 8192; o = []
                for u in range(4):
                    if chunks[n][0] == 'OW': o += [f'ds_read_b64_tr_b16 {vr(fb+4*u+2*t,2)}, v{RT[hi]} offset:{off + (2*u+t)*1024}' for t in range(2)]
                    else: o.append(f'ds_read_b128 {vr(fb+4*u,4)}, v{RA[4*hi+u]} offset:{off}')
                return o
            def own_mf(k, fb):
                return [f'v_mfma_f32_32x32x16_bf16 {vr(accS,16)}, {vr(fb+4*u,4)}, {vr(X(4*k+u),4)}, {vr(accS,16)}' for u in range(4)]
            snd = send(accA, 4)
            interval(39, mfmas(38), own_reads(39, 0, F1), [], dma=False)
            interleave(own_mf(0, F1), own_reads(39, 1, F0), snd)
            interval(40, own_mf(1, F0), own_reads(40, 0, F1), [], dma=False)
            interleave(own_mf(2, F1), own_reads(40, 1, F0), [])
            interval(41, own_mf(3, F0), own_reads(41, 0, F1), [], dma=False)
            interleave(own_mf(4, F1), own_reads(41, 1, F0), [])
            interleave(own_mf(5, F0), [], [])
            e(f's_lshl_b32 s{sT1}, s{sW}, 12\nv_lshlrev_b32 v{T[0]}, 4, v{L}\nv_add_u32 v{T[0]}, s{sT1}, v{T[0]}')
            for g in range(4): e(f'ds_write_b128 v{T[0]}, {vr(accS+4*g,4)} offset:{g*1024}')
            e.wait_lg(0); e('s_barrier')
            stamp()
            if STAMPS: e('s_branch L_stamps')
            else: e('s_endpgm')
        else:
            G1, G2_, G3, G4 = X(0), X(3), X(6), X(9)
            XL = X(12); DS_ = X(14); B2_ = X(18)
            interval(39, mfmas(38), [], gather_loads(2, GL), dma=False)
            put(send(accA, 5))
            put(gather_loads(3, G2_))
            a0, a1 = T[0], T[1]
            e(f'v_bfe_u32 v{a0}, v{L}, 2, 1\nv_lshlrev_b32 v{a0}, 4, v{a0}\nv_bfe_u32 v{a1}, v{L}, 3, 2\nv_lshl_add_u32 v{a0}, v{a1}, 2, v{a0}\nv_and_b32 v{a1}, 3, v{L}')
            e(f's_lshl_b32 s{sT1}, s{sI}, 1\ns_add_u32 s{sT1}, s{sT1}, s{sTB}\ns_lshl_b32 s{sT1}, s{sT1}, 5\nv_add3_u32 v{a0}, v{a0}, v{a1}, s{sT1}')
            e(f'v_mul_u32_u24 v{a0}, 896, v{a0}\nv_lshrrev_b32 v{a1}, 5, v{L}\nv_lshl_add_u32 v{a0}, v{a1}, 3, v{a0}')
            e(f's_lshl_b32 s{sT1}, s{sJ}, 1\ns_add_u32 s{sT1}, s{sT1}, s{sDT}\ns_lshl_b32 s{sT1}, s{sT1}, 6\nv_add_u32 v{vXA}, s{sT1}, v{a0}\nv_lshlrev_b32 v{vOA}, 1, v{vXA}')
            for g in range(4): e(f'buffer_load_dwordx2 {vr(XL+2*g,2)}, v{vXA}, {sr(rX,4)}, 0 offen offset:{g*16}')
            e(f's_lshl_b32 s{sT1}, s{sDT}, 7\ns_add_u32 s{sT1}, s{sT1}, {TDS}\nv_lshlrev_b32 v{a1}, 4, v{a1}\nv_add_u32 v{a1}, s{sT1}, v{a1}')
            for g in range(4): e(f'ds_read_b128 {vr(DS_+4*g,4)}, v{a1} offset:{g*32}\nds_read_b128 {vr(B2_+4*g,4)}, v{a1} offset:{512+g*32}')
            interval(40, [], [], [], dma=False)
            e(f'v_rcp_f32 v{vIG}, v{vIG}')
            for k in range(16):
                xr = XL + k // 2; tm = T[2 + (k & 1)]
                e(f'v_lshlrev_b32 v{tm}, 16, v{xr}' if k % 2 == 0 else f'v_and_b32 v{tm}, 0xffff0000, v{xr}')
                e(f'v_mul_f32 v{tm}, v{tm}, v{DS_+k}\nv_fmac_f32 v{accS+k}, v{vIG}, v{B2_+k}\nv_fmac_f32 v{accS+k}, v{vG}, v{tm}')
            interval(41, [], [], [], dma=False)
            put(gather_loads(4, G3)); put(gather_loads(5, G4))
            gather_check([2, 3], [GL, G2_])()
            put(accum(GL, False)); put(accum(G2_, False))
            gather_check([4, 5], [G3, G4])()
            put(accum(G3, False)); put(accum(G4, False))
            e(f's_and_b32 s{sT1}, s{sW}, 3\ns_lshl_b32 s{sT1}, s{sT1}, 12\nv_lshlrev_b32 v{T[0]}, 4, v{L}\nv_add_u32 v{T[0]}, s{sT1}, v{T[0]}')
            e('s_barrier')
            for g in range(4): e(f'ds_read_b128 {vr(accA+4*g,4)}, v{T[0]} offset:{g*1024}')
            for g in range(4):
                for i in range(4): e(f'v_add_f32 v{accS+4*g+i}, v{accS+4*g+i}, v{accA+4*g+i}')
                e(f'buffer_store_dwordx4 {vr(accS+4*g,4)}, v{vOA}, {sr(rOUT,4)}, 0 offen offset:{g*32} {cfg.get("outf","")}')
            if STAMPS: e('s_waitcnt vmcnt(0)')
            stamp()
    if STAMPS:
        e('L_stamps:')
        e('s_waitcnt lgkmcnt(0)')
        e(f's_lshl_b32 s{sT0}, s2, 7\ns_lshr_b32 s{sT1}, s{sW}, 2\ns_mul_i32 s{sT1}, s{sT1}, 40\ns_add_u32 s{sT0}, s{sT0}, s{sT1}\ns_add_u32 s{sT0}, s{sT0}, {WS_STAMP}\nv_mov_b32 v2, s{sT0}')
        for k in range(5):
            e(f'v_mov_b32 v4, s{sSTAMP+2*k}\nv_mov_b32 v5, s{sSTAMP+2*k+1}\nbuffer_store_dwordx2 v[4:5], v2, {sr(rWS,4)}, 0 offen offset:{8*k}\ns_nop 1')
    e('L_end:')
    e('s_endpgm')
    body = e.text()
    hdr = f'; @launch grid=(256,1,1) block=(512,1,1) lds={LDS_BYTES}\n.amdgcn_target "amdgcn-amd-amdhsa--gfx950"\n.text\n.globl {KN}\n.p2align 8\n.type {KN},@function\n{KN}:\n'
    tail = f'''L_code_end:
.section .rodata,"a"
.p2align 6
.amdhsa_kernel {KN}
  .amdhsa_next_free_vgpr 256
  .amdhsa_next_free_sgpr 102
  .amdhsa_accum_offset 256
  .amdhsa_group_segment_fixed_size 0
  .amdhsa_kernarg_size 144
  .amdhsa_user_sgpr_count 2
  .amdhsa_user_sgpr_kernarg_segment_ptr 1
  .amdhsa_system_sgpr_workgroup_id_x 1
.end_amdhsa_kernel
'''
    sys.stderr.write('nops %d counts %s\n' % (e.nops, e.count))
    txt = hdr + body + tail
    import subprocess, tempfile, os
    with tempfile.TemporaryDirectory() as td:
        p = os.path.join(td, 'a.s'); o = os.path.join(td, 'a.o')
        open(p, 'w').write(txt.replace('@CODE_LEN@', '0x10000'))
        subprocess.run(['clang', '-x', 'assembler', '-target', 'amdgcn-amd-amdhsa', '-mcpu=gfx950', '-c', p, '-o', o], check=True)
        out = subprocess.run(['llvm-readelf', '-s', o], capture_output=True, text=True).stdout
        ln = [int(l.split()[1], 16) for l in out.splitlines() if l.strip().endswith('L_code_end')][0]
    sys.stderr.write('code bytes %d\n' % ln)
    return txt.replace('@CODE_LEN@', '0x%x' % ((ln - 128) & ~3))

if __name__ == '__main__':
    import json
    out = sys.argv[1]
    cfg = json.loads(sys.argv[2]) if len(sys.argv) > 2 else {}
    open(out, 'w').write(gen(cfg))
```
